```python
import torch

def _softmax(x, axis=-1):
    return torch.softmax(x, dim=axis)
def _gelu(x):
    return torch.nn.functional.gelu(x, approximate="tanh")
def _silu(x):
    return torch.nn.functional.silu(x)
def _sigmoid(x):
    return torch.sigmoid(x)
def _layernorm(x, axis=-1, eps=1e-5):
    m = x.mean(dim=axis, keepdim=True)
    v = x.var(dim=axis, keepdim=True, unbiased=False)
    return (x - m) / torch.sqrt(v + eps)
def _scatter_add(tgt, idx, src, axis=0):
    return tgt.clone().index_add_(axis, idx, src)
def _segment_sum(src, seg, n):
    out = torch.zeros((n,) + src.shape[1:], dtype=src.dtype)
    return out.index_add_(0, seg, src)
def _pad(x, pw):
    flat = tuple(v for pair in reversed(pw) for v in pair)
    return torch.nn.functional.pad(x, flat)

kernel_name = 'standalone__gqa_softmax__near_ridge'

def setup_inputs():

    _w = (lambda a: (lambda t: t.to(torch.bfloat16) if t.is_floating_point() else t)(torch.as_tensor(a)))
    B, Hq, Hkv, Sq, Sk, D = 16, 32, 8, 96, 512, 128
    return {
        "q": _w((lambda *s: torch.randn(*s, dtype=torch.bfloat16) * 0.8)(B, Hq, Sq, D)),
        "k": _w((lambda *s: torch.randn(*s, dtype=torch.bfloat16) * 0.8)(B, Hkv, Sk, D)),
        "v": _w((lambda *s: torch.randn(*s, dtype=torch.bfloat16) * 0.05)(B, Hkv, Sk, D)),
    }

def reference(q, k, v):
    B, Hq, Sq, D = q.shape
    Hkv = k.shape[1]
    rep = Hq // Hkv
    k = (lambda x, n, axis: torch.repeat_interleave(x, n, dim=axis))(k, rep, axis=1)
    v = (lambda x, n, axis: torch.repeat_interleave(x, n, dim=axis))(v, rep, axis=1)
    scale = D ** -0.5
    scores = torch.einsum("bhqd,bhkd->bhqk", q, k) * scale
    p = _softmax(scores, axis=-1)
    return torch.einsum("bhqk,bhkd->bhqd", p, v)
```

```python
import re

REG_RE = re.compile(r'^(-?\|?)([vas])(\d+)\|?$')
RNG_RE = re.compile(r'^(-?\|?)([vas])\[(\d+):(\d+)\]\|?$')


def regs_of(op):
    op = op.strip()
    if op.startswith('abs(') and op.endswith(')'):
        op = op[4:-1]
    if op.startswith('-abs(') and op.endswith(')'):
        op = op[5:-1]
    m = REG_RE.match(op)
    if m:
        return [(m.group(2), int(m.group(3)))]
    m = RNG_RE.match(op)
    if m:
        return [(m.group(2), i) for i in range(int(m.group(3)), int(m.group(4)) + 1)]
    if op == 'vcc':
        return [('s', 'vcc_lo'), ('s', 'vcc_hi')]
    if op in ('vcc_lo', 'vcc_hi'):
        return [('s', op)]
    if op == 'exec':
        return [('s', 'exec_lo'), ('s', 'exec_hi')]
    if op in ('exec_lo', 'exec_hi'):
        return [('s', op)]
    if op == 'm0':
        return [('s', 'm0')]
    return []


TRANS = ('v_exp_f32', 'v_log_f32', 'v_rcp_f32', 'v_rsq_f32', 'v_sqrt_f32', 'v_sin_f32', 'v_cos_f32',
         'v_rcp_iflag_f32')


def split_ops(s):
    out, depth, cur = [], 0, ''
    for ch in s:
        if ch in '[(':
            depth += 1
        if ch in '])':
            depth -= 1
        if ch == ',' and depth == 0:
            out.append(cur.strip())
            cur = ''
        else:
            cur += ch
    if cur.strip():
        out.append(cur.strip())
    return out


class Inst:
    __slots__ = ('text', 'mn', 'kind', 'reads', 'writes', 'passes', 'srcc', 'ab', 'trans', 'tag', 'lds',
                 'exact_c', 'cost', 'wide_store', 'data')

    def __init__(self, text, tag=None):
        self.text = text.strip()
        self.tag = tag
        t = self.text.split(';')[0].strip()
        self.reads, self.writes = [], []
        self.passes = 0
        self.srcc, self.ab = [], []
        self.trans = False
        self.lds = False
        self.wide_store = False
        self.data = []
        if t.endswith(':') or t.startswith('.') or not t:
            self.mn, self.kind = t, 'label'
            return
        parts = t.split(None, 1)
        mn = parts[0]
        self.mn = mn
        rest = parts[1] if len(parts) > 1 else ''
        ops = split_ops(rest)
        mods = ''
        if ops:
            last = ops[-1].split(None, 1)
            ops[-1] = last[0]
            mods = last[1] if len(last) > 1 else ''
        R = lambda i: regs_of(ops[i]) if i < len(ops) else []
        base = re.sub(r'_(e32|e64|dpp|sdwa)$', '', mn)
        if mn.startswith('v_mfma') or mn.startswith('v_smfmac'):
            self.kind = 'mfma'
            self.writes = R(0)
            self.ab = R(1) + R(2)
            self.srcc = R(3)
            self.reads = self.ab + self.srcc
            self.passes = 8 if '32x32' in mn else 4
        elif mn.startswith('v_'):
            self.kind = 'valu'
            self.trans = base in TRANS
            if base.startswith('v_cmp'):
                self.writes = R(0)
                if base.startswith('v_cmpx'):
                    self.writes += regs_of('exec')
                self.reads = sum((R(i) for i in range(1, len(ops))), [])
            elif base in ('v_permlane16_swap_b32', 'v_permlane32_swap_b32'):
                self.writes = R(0) + R(1)
                self.reads = R(0) + R(1)
            elif base in ('v_add_co_u32', 'v_sub_co_u32', 'v_addc_co_u32', 'v_subb_co_u32'):
                self.writes = R(0) + R(1)
                self.reads = sum((R(i) for i in range(2, len(ops))), [])
            elif base in ('v_fmac_f32', 'v_dot2c_f32_bf16', 'v_pk_fmac_f16', 'v_writelane_b32'):
                self.writes = R(0)
                self.reads = sum((R(i) for i in range(0, len(ops))), [])
            else:
                self.writes = R(0)
                self.reads = sum((R(i) for i in range(1, len(ops))), [])
                if mn.endswith('_dpp') or 'row_' in mods or 'quad_perm' in mods:
                    self.reads += R(0)
            self.reads += regs_of('exec')
        elif mn.startswith('ds_'):
            self.kind = 'ds'
            if mn.startswith('ds_read') or mn.startswith('ds_bpermute') or mn.startswith('ds_permute') \
                    or mn.startswith('ds_swizzle'):
                self.writes = R(0)
                self.reads = sum((R(i) for i in range(1, len(ops))), [])
            else:
                self.reads = sum((R(i) for i in range(0, len(ops))), [])
                self.data = sum((R(i) for i in range(1, len(ops))), [])
        elif mn.startswith('buffer_') or mn.startswith('global_'):
            self.kind = 'vmem'
            allm = ' ' + mods + ' '
            if ' lds ' in allm or mn.startswith('global_load_lds'):
                self.lds = True
                self.reads = sum((R(i) for i in range(0, len(ops))), []) + regs_of('m0')
            elif '_load' in mn:
                self.writes = R(0)
                self.reads = sum((R(i) for i in range(1, len(ops))), [])
                if 'd16' in mn:
                    self.reads += R(0)
            elif '_store' in mn:
                if mn.startswith('buffer_'):
                    self.data = R(0)
                else:
                    self.data = R(1)
                self.reads = sum((R(i) for i in range(0, len(ops))), [])
                self.wide_store = ('x3' in mn or 'x4' in mn)
            elif 'atomic' in mn:
                self.reads = sum((R(i) for i in range(0, len(ops))), [])
                if 'sc0' in allm:
                    self.writes = R(0)
            else:
                self.reads = sum((R(i) for i in range(0, len(ops))), [])
        elif mn.startswith('s_'):
            self.kind = 'salu'
            if mn in ('s_waitcnt', 's_barrier', 's_nop', 's_endpgm', 's_setprio', 's_sleep', 's_branch') \
                    or mn.startswith('s_cbranch'):
                self.kind = 'ctrl'
            elif mn.startswith('s_cmp'):
                self.reads = sum((R(i) for i in range(0, len(ops))), [])
            elif mn.startswith('s_load') or mn.startswith('s_buffer_load') or mn in ('s_memtime', 's_memrealtime'):
                self.kind = 'smem'
                self.writes = R(0)
                self.reads = sum((R(i) for i in range(1, len(ops))), [])
            else:
                self.writes = R(0)
                self.reads = sum((R(i) for i in range(1, len(ops))), [])
                if 'saveexec' in mn:
                    self.writes += regs_of('exec')
                    self.reads += regs_of('exec')
                if mn in ('s_addk_i32', 's_mulk_i32'):
                    self.reads += R(0)
        else:
            raise ValueError('unknown instr: ' + text)

    def __repr__(self):
        return self.text


def nop_states(text):
    m = re.match(r's_nop\s+(\d+)', text)
    return int(m.group(1)) + 1 if m else 1


class Finalizer:
    def __init__(self, verbose=False):
        self.out = []
        self.pos = 0
        self.valu_w = {}
        self.trans_w = {}
        self.valu_sw = {}
        self.salu_m0 = -100
        self.mfma_w = {}
        self.mfma_c = {}
        self.store_data = {}
        self.lgkm = []
        self.vm = []
        self.n_nop = 0
        self.n_wait = 0
        self.exec_w = -100

    def _emit(self, inst):
        self.out.append(inst)
        if inst.kind == 'label':
            return
        self.pos += nop_states(inst.text) if inst.mn == 's_nop' else 1

    def _need(self, at, states):
        gap = self.pos - at - 1
        return max(0, states - gap)

    def add(self, inst):
        if isinstance(inst, str):
            inst = Inst(inst)
        if inst.kind == 'label':
            self._emit(inst)
            return
        if inst.mn == 's_waitcnt':
            m = re.search(r'lgkmcnt\((\d+)\)', inst.text)
            if m:
                n = int(m.group(1))
                if n == 0:
                    self.lgkm = []
                elif all(e is not None for e in self.lgkm):
                    self.lgkm = self.lgkm[max(0, len(self.lgkm) - n):] if n < len(self.lgkm) else self.lgkm
            m = re.search(r'vmcnt\((\d+)\)', inst.text)
            if m:
                n = int(m.group(1))
                self.vm = self.vm[len(self.vm) - n:] if n < len(self.vm) else self.vm
                if n == 0:
                    self.vm = []
            self._emit(inst)
            return
        touched = set(inst.reads) | set(inst.writes)
        need_l = None
        for i, e in enumerate(self.lgkm):
            if e is None:
                continue
            if e & touched:
                need_l = i
        smem_pending = any(e is None or getattr(e, 'smem', False) for e in self.lgkm)
        wl = wv = None
        if need_l is not None:
            after = len(self.lgkm) - 1 - need_l
            if any(isinstance(e, SmemSet) for e in self.lgkm):
                wl = 0
            else:
                wl = min(after, 15)
        need_v = None
        for i, e in enumerate(self.vm):
            if e & touched:
                need_v = i
        if need_v is not None:
            wv = min(len(self.vm) - 1 - need_v, 63)
        if wl is not None or wv is not None:
            s = 's_waitcnt'
            if wv is not None:
                s += ' vmcnt(%d)' % wv
            if wl is not None:
                s += ' lgkmcnt(%d)' % wl
            self.n_wait += 1
            self.add(Inst(s))
        need = 0
        k = inst.kind
        if k == 'mfma':
            for r in inst.reads:
                if r in self.valu_w:
                    need = max(need, self._need(self.valu_w[r], 2))
            for r in inst.ab:
                if r in self.mfma_w:
                    p, ps, _ = self.mfma_w[r]
                    need = max(need, self._need(p, 8 if ps == 4 else 12))
            for r in inst.srcc:
                if r in self.mfma_w:
                    p, ps, w = self.mfma_w[r]
                    if tuple(w) == tuple(inst.srcc) and ps == inst.passes:
                        pass
                    else:
                        need = max(need, self._need(p, 6 if ps == 4 else 10))
            for r in inst.writes:
                if r in self.mfma_w and r not in inst.srcc:
                    p, ps, w = self.mfma_w[r]
                    need = max(need, self._need(p, 6 if ps == 4 else 10))
                if r in self.mfma_c and r not in inst.srcc:
                    pass
            need = max(need, self._need(self.exec_w, 4))
        if k in ('valu', 'ds', 'vmem'):
            chk = set(inst.reads) | set(inst.writes)
            for r in chk:
                if r in self.mfma_w:
                    p, ps, _ = self.mfma_w[r]
                    need = max(need, self._need(p, 8 if ps == 4 else 12))
        if k == 'valu':
            for r in inst.writes:
                if r in self.mfma_c:
                    p, ps = self.mfma_c[r]
                    need = max(need, self._need(p, 3 if ps == 4 else 7))
                if r in self.store_data:
                    need = max(need, self._need(self.store_data[r], 2))
            if not inst.trans:
                for r in inst.reads:
                    if r in self.trans_w:
                        need = max(need, self._need(self.trans_w[r], 1))
            if 'permlane' in inst.mn or '_dpp' in inst.mn or 'row_' in inst.text or 'quad_perm' in inst.text:
                for r in inst.reads:
                    if r in self.valu_w:
                        need = max(need, self._need(self.valu_w[r], 2))
            if inst.mn.startswith('v_readfirstlane') or inst.mn.startswith('v_readlane'):
                for r in inst.reads:
                    if r in self.valu_w:
                        need = max(need, self._need(self.valu_w[r], 1))
            for r in inst.reads:
                if r in self.valu_sw:
                    need = max(need, self._need(self.valu_sw[r], 2))
        if k in ('ds', 'vmem'):
            for r in inst.writes:
                if r in self.mfma_c:
                    p, ps = self.mfma_c[r]
                    need = max(need, self._need(p, 3 if ps == 4 else 7))
                if r in self.store_data:
                    need = max(need, self._need(self.store_data[r], 1))
            if k == 'vmem':
                for r in inst.reads:
                    if r in self.valu_sw:
                        need = max(need, self._need(self.valu_sw[r], 5))
                if inst.lds:
                    need = max(need, self._need(self.salu_m0, 1))
            for r in inst.reads:
                if r in self.trans_w:
                    need = max(need, self._need(self.trans_w[r], 1))
        if k in ('salu', 'ctrl', 'smem'):
            for r in inst.reads:
                if r in self.valu_sw:
                    need = max(need, self._need(self.valu_sw[r], 4))
            if inst.mn in ('s_cbranch_vccnz', 's_cbranch_vccz'):
                for r in regs_of('vcc'):
                    if r in self.valu_sw:
                        need = max(need, self._need(self.valu_sw[r], 5))
        while need > 0:
            n = min(need, 16)
            self.n_nop += 1
            self._emit(Inst('s_nop %d' % (n - 1)))
            need -= n
        p = self.pos
        if k == 'valu':
            for r in inst.writes:
                if r[0] == 's':
                    self.valu_sw[r] = p
                    if r[1] in ('exec_lo', 'exec_hi'):
                        self.exec_w = p
                else:
                    self.valu_w[r] = p
                    self.mfma_w.pop(r, None)
                    if inst.trans:
                        self.trans_w[r] = p
                    else:
                        self.trans_w.pop(r, None)
        elif k == 'mfma':
            for r in inst.writes:
                self.mfma_w[r] = (p, inst.passes, inst.writes)
                self.valu_w.pop(r, None)
                self.trans_w.pop(r, None)
            for r in inst.srcc:
                self.mfma_c[r] = (p, inst.passes)
        elif k == 'salu':
            for r in inst.writes:
                self.valu_sw.pop(r, None)
            if ('s', 'm0') in inst.writes:
                self.salu_m0 = p
        elif k == 'ds':
            self.lgkm.append(set(inst.writes))
            for r in inst.writes:
                self.valu_w.pop(r, None)
                self.trans_w.pop(r, None)
        elif k == 'smem':
            self.lgkm.append(SmemSet(inst.writes))
        elif k == 'vmem':
            self.vm.append(set(inst.writes))
            if inst.wide_store:
                for r in inst.data:
                    self.store_data[r] = p
            for r in inst.writes:
                self.valu_w.pop(r, None)
                self.trans_w.pop(r, None)
        self._emit(inst)

    def text(self):
        lines = []
        for i in self.out:
            lines.append(i.text if i.kind == 'label' else '    ' + i.text)
        return '\n'.join(lines) + '\n'


class SmemSet(set):
    smem = True


def finalize(insts):
    f = Finalizer()
    for i in insts:
        f.add(i)
    return f
```

```python
import sys, math
from asmlib import Inst, finalize

NAME = "standalone__gqa_softmax__near_ridge"
HDR = """; Kernarg layout for this problem (48 bytes, ptrs only, base s[0:1]):
; @launch grid=(256,1,1) block=(256,1,1) lds=163840
.amdgcn_target "amdgcn-amd-amdhsa--gfx950"
.text
.globl {n}_kernel
.p2align 8
.type {n}_kernel,@function
{n}_kernel:
"""
FTR = """
.section .rodata,"a"
.p2align 6
.amdhsa_kernel {n}_kernel
  .amdhsa_next_free_vgpr {nv}
  .amdhsa_next_free_sgpr 96
  .amdhsa_accum_offset {ao}
  .amdhsa_group_segment_fixed_size 0
  .amdhsa_kernarg_size 48
  .amdhsa_user_sgpr_count 2
  .amdhsa_user_sgpr_kernarg_segment_ptr 1
  .amdhsa_system_sgpr_workgroup_id_x 1
  .amdhsa_float_denorm_mode_32 3
.end_amdhsa_kernel
"""

OPT = dict(stamps=0, compute=1, store=1)
for a in sys.argv[2:]:
    k, v = a.split('=')
    OPT[k] = int(v)

C_SCALE = (128 ** -0.5) * math.log2(math.e)


def f2u(x):
    import struct
    return struct.unpack('<I', struct.pack('<f', x))[0]


SRD_Q, SRD_K, SRD_V, SRD_O = 4, 8, 12, 16
S_QOFF, S_KVOFF, S_W, S_C, S_T0, S_T1 = 28, 29, 30, 31, 32, 33
S_M0BASE = 34
S_WS = 36
S_ST = 40
V_KADDR = 8
V_VADDR = 20
V_DMA0, V_DMA1 = 44, 45
V_MC = 46
V_L = 49
V_OADDR = 52
V_T = 53
V_S = 56
V_P = 72
NPBUF = 12
V_K = 128
V_V = 192
A_O = 0
A_Q = 96


def vr(b, n=1):
    return 'v%d' % b if n == 1 else 'v[%d:%d]' % (b, b + n - 1)


def ar(b, n=1):
    return 'a%d' % b if n == 1 else 'a[%d:%d]' % (b, b + n - 1)


def lds_addr(kind, idx, byte):
    region, imm = byte >> 16, byte & 0xffff
    if kind == 'k':
        return V_KADDR + region * 4 + idx, imm
    return V_VADDR + region * 8 + idx, imm


CHUNKS = [('q', 0), ('q', 1), ('q', 2), ('k', 0), ('k', 1), ('v', 0)]
for j in range(2, 8):
    CHUNKS += [('k', j), ('v', j - 1)]
CHUNKS += [('v', 7)]
assert len(CHUNKS) == 19
NSLOT = 10
SLOT = {}


def build():
    I = []
    e = lambda s: I.append(Inst(s))

    def stamp(k):
        if not OPT['stamps']:
            return
        e('s_memrealtime s[%d:%d]' % (S_ST, S_ST + 1))
        e('s_waitcnt lgkmcnt(0)')
        e('v_mov_b32 v4, s%d' % S_ST)
        e('v_mov_b32 v5, s%d' % (S_ST + 1))
        e('v_mov_b32 v6, %d' % (k * 8))
        e('s_cmp_lg_u32 s%d, 0' % S_W)
        e('s_cbranch_scc1 L_st%d' % k)
        e('global_store_dwordx2 v6, v[4:5], s[%d:%d]' % (S_WS, S_WS + 1))
        e('L_st%d:' % k)

    e('s_cmp_ge_u32 s2, 256')
    e('s_cbranch_scc1 L_end')
    e('s_load_dwordx4 s[20:23], s[0:1], 0')
    e('s_load_dwordx4 s[24:27], s[0:1], 16')
    if OPT['stamps']:
        e('s_load_dwordx2 s[%d:%d], s[0:1], 40' % (S_WS, S_WS + 1))
    e('s_and_b32 s%d, s2, 7' % S_T0)
    e('s_lshr_b32 s%d, s2, 4' % S_T1)
    e('s_lshl_b32 s%d, s%d, 3' % (S_T1, S_T1))
    e('s_or_b32 s%d, s%d, s%d' % (S_T0, S_T0, S_T1))
    e('s_lshr_b32 s%d, s2, 3' % S_T1)
    e('s_and_b32 s%d, s%d, 1' % (S_T1, S_T1))
    e('s_lshl_b32 s%d, s%d, 17' % (S_KVOFF, S_T0))
    e('s_mul_i32 s%d, s%d, 98304' % (S_QOFF, S_T0))
    e('s_mul_i32 s%d, s%d, 49152' % (S_T1, S_T1))
    e('s_add_u32 s%d, s%d, s%d' % (S_QOFF, S_QOFF, S_T1))
    e('v_lshrrev_b32 v1, 6, v0')
    e('v_readfirstlane_b32 s%d, v1' % S_W)
    e('v_and_b32 v0, 63, v0')
    e('s_lshl_b32 s%d, s%d, 12' % (S_M0BASE, S_W))
    e('v_lshrrev_b32 v1, 4, v0')
    e('v_and_b32 v2, 15, v0')
    e('v_lshlrev_b32 v3, 1, v1')
    e('v_xor_b32 v3, v2, v3')
    e('v_lshlrev_b32 v3, 4, v3')
    e('v_lshl_add_u32 v3, v1, 8, v3')
    e('v_add_u32 v%d, s%d, v3' % (V_DMA0, S_M0BASE))
    e('v_xor_b32 v%d, 128, v%d' % (V_DMA1, V_DMA0))
    e('s_waitcnt lgkmcnt(0)')
    for srd, p, sz in ((SRD_Q, 20, 12582912), (SRD_K, 22, 16777216), (SRD_V, 24, 16777216), (SRD_O, 26, 12582912)):
        e('s_mov_b32 s%d, s%d' % (srd, p))
        e('s_and_b32 s%d, s%d, 0xffff' % (srd + 1, p + 1))
        e('s_mov_b32 s%d, %d' % (srd + 2, sz))
        e('s_mov_b32 s%d, 0x20000' % (srd + 3))
    if OPT['stamps']:
        e('s_mul_i32 s%d, s2, %d' % (S_T0, OPT['stamps'] * 8))
        e('s_add_u32 s%d, s%d, s%d' % (S_WS, S_WS, S_T0))
        e('s_addc_u32 s%d, s%d, 0' % (S_WS + 1, S_WS + 1))
    stamp(0)

    issued = [0]

    def dma_chunk(c, slot):
        buf, t = CHUNKS[c]
        SLOT[(buf, t)] = slot
        srd = {'q': SRD_Q, 'k': SRD_K, 'v': SRD_V}[buf]
        base = S_QOFF if buf == 'q' else S_KVOFF
        out = []
        out.append('s_add_u32 s%d, s%d, %d' % (S_T0, base, t * 16384))
        out.append('s_add_u32 m0, s%d, %d' % (S_M0BASE, slot * 16384))
        for j in range(4):
            out.append('buffer_load_dwordx4 v%d, s[%d:%d], s%d offen offset:%d lds' % (
                V_DMA1 if j & 1 else V_DMA0, srd, srd + 3, S_T0, j * 1024))
        issued[0] += 1
        return out

    for c in range(NSLOT):
        for s in dma_chunk(c, c):
            e(s)
    stamp(1)
    e('v_and_b32 v4, 7, v0')
    e('v_lshlrev_b32 v4, 1, v4')
    e('v_xor_b32 v4, v1, v4')
    e('v_lshlrev_b32 v4, 4, v4')
    e('v_lshl_add_u32 v4, v2, 8, v4')
    for ks in range(4):
        e('v_xor_b32 v%d, %d, v4' % (V_KADDR + ks, ks * 64))
        e('v_add_u32 v%d, 0x10000, v%d' % (V_KADDR + 4 + ks, V_KADDR + ks))
        e('v_add_u32 v%d, 0x20000, v%d' % (V_KADDR + 8 + ks, V_KADDR + ks))
    e('v_bfe_u32 v4, v0, 2, 2')
    e('v_lshl_add_u32 v4, v1, 2, v4')
    e('v_and_b32 v5, 7, v4')
    e('v_lshlrev_b32 v5, 1, v5')
    e('v_bfe_u32 v6, v0, 1, 1')
    e('v_xor_b32 v5, v5, v6')
    e('v_lshlrev_b32 v5, 4, v5')
    e('v_and_b32 v6, 1, v0')
    e('v_lshl_add_u32 v5, v6, 3, v5')
    e('v_lshl_add_u32 v4, v4, 8, v5')
    for dt in range(8):
        e('v_xor_b32 v%d, %d, v4' % (V_VADDR + dt, dt * 32))
        e('v_add_u32 v%d, 0x10000, v%d' % (V_VADDR + 8 + dt, V_VADDR + dt))
        e('v_add_u32 v%d, 0x20000, v%d' % (V_VADDR + 16 + dt, V_VADDR + dt))
    e('s_mul_i32 s%d, s%d, %d' % (S_T1, S_W, 48 * 256))
    e('s_add_u32 s%d, s%d, s%d' % (S_T1, S_T1, S_QOFF))
    e('v_and_b32 v4, 1, v1')
    e('v_lshlrev_b32 v4, 5, v4')
    e('v_lshrrev_b32 v5, 1, v1')
    e('v_lshl_add_u32 v4, v5, 4, v4')
    e('v_lshl_add_u32 v4, v2, 8, v4')
    e('v_add_u32 v%d, s%d, v4' % (V_OADDR, S_T1))
    e('s_mov_b32 s%d, 0x%08x' % (S_C, f2u(C_SCALE)))
    for i in range(96):
        e('v_accvgpr_write_b32 a%d, 0' % (A_O + i))
    for rt in range(3):
        e('v_mov_b32 v%d, 0' % (V_L + rt))

    def need_pos(bufs):
        return max(CHUNKS.index(b) for b in bufs)

    def barrier(bufs):
        n = 4 * (issued[0] - 1 - need_pos(bufs))
        return ['s_waitcnt vmcnt(%d) lgkmcnt(0)' % n, 's_barrier']

    def kfrag_reads(s):
        j, h = s >> 1, s & 1
        out = []
        for kt in range(2):
            for ks in range(4):
                byte = SLOT[('k', j)] * 16384 + (h * 32 + kt * 16) * 256
                reg, imm = lds_addr('k', ks, byte)
                out.append('ds_read_b128 %s, v%d offset:%d' % (vr(V_K + (s & 1) * 32 + (kt * 4 + ks) * 4, 4), reg, imm))
        return out

    def vfrag_reads(s):
        j, h = s >> 1, s & 1
        out = []
        for dt in range(8):
            for half in range(2):
                byte = SLOT[('v', j)] * 16384 + (h * 32 + half * 16) * 256
                reg, imm = lds_addr('v', dt, byte)
                out.append('ds_read_b64_tr_b16 %s, v%d offset:%d' % (
                    vr(V_V + (s & 1) * 32 + dt * 4 + half * 2, 2), reg, imm))
        return out

    def qk(u):
        s, rt = divmod(u, 3)
        out = []
        for kt in range(2):
            d = vr(V_S + (u & 1) * 8 + kt * 4, 4)
            for ks in range(4):
                out.append('v_mfma_f32_16x16x32_bf16 %s, %s, %s, %s' % (
                    d, vr(V_K + (s & 1) * 32 + (kt * 4 + ks) * 4, 4), ar(A_Q + (rt * 4 + ks) * 4, 4),
                    d if ks else '0'))
        return out

    def pv(u):
        s, rt = divmod(u, 3)
        out = []
        for dt in range(8):
            d = ar(A_O + (rt * 8 + dt) * 4, 4)
            out.append('v_mfma_f32_16x16x32_bf16 %s, %s, %s, %s' % (
                d, vr(V_V + (s & 1) * 32 + dt * 4, 4), vr(V_P + (u % NPBUF) * 4, 4), d))
        return out

    def sm(u):
        s, rt = divmod(u, 3)
        S = V_S + (u & 1) * 8
        P = V_P + (u % NPBUF) * 4
        out = []
        if s == 0:
            t, t2 = V_T, V_T + 1
            out.append('v_max3_f32 v%d, v%d, v%d, v%d' % (t, S, S + 1, S + 2))
            out.append('v_max3_f32 v%d, v%d, v%d, v%d' % (t, t, S + 3, S + 4))
            out.append('v_max3_f32 v%d, v%d, v%d, v%d' % (t, t, S + 5, S + 6))
            out.append('v_max_f32 v%d, v%d, v%d' % (t, t, S + 7))
            out.append('v_mov_b32 v%d, v%d' % (t2, t))
            out.append('v_permlane16_swap_b32 v%d, v%d' % (t, t2))
            out.append('v_max_f32 v%d, v%d, v%d' % (t, t, t2))
            out.append('v_mov_b32 v%d, v%d' % (t2, t))
            out.append('v_permlane32_swap_b32 v%d, v%d' % (t, t2))
            out.append('v_max_f32 v%d, v%d, v%d' % (t, t, t2))
            out.append('v_mul_f32 v%d, s%d, v%d' % (V_MC + rt, S_C, t))
        for i in range(8):
            out.append('v_fma_f32 v%d, v%d, s%d, -v%d' % (S + i, S + i, S_C, V_MC + rt))
        for i in range(8):
            out.append('v_exp_f32 v%d, v%d' % (S + i, S + i))
            if i >= 1:
                out.append('v_add_f32 v%d, v%d, v%d' % (V_L + rt, V_L + rt, S + i - 1))
            if i & 1 and i >= 3:
                out.append('v_cvt_pk_bf16_f32 v%d, v%d, v%d' % (P + (i - 3) // 2, S + i - 3, S + i - 2))
        out.append('v_add_f32 v%d, v%d, v%d' % (V_L + rt, V_L + rt, S + 7))
        out.append('v_cvt_pk_bf16_f32 v%d, v%d, v%d' % (P + 3, S + 6, S + 7))
        return out

    def cost(s):
        if s.startswith('v_exp') or s.startswith('v_rcp'):
            return 8
        if s.startswith('s_'):
            return 2
        return 4

    def interleave(mf, fill):
        if not mf:
            for s in fill:
                e(s)
            return
        tot = sum(cost(s) for s in fill)
        acc, fi = 0, 0
        for i, m in enumerate(mf):
            e(m)
            target = tot * (i + 1) / len(mf)
            while fi < len(fill) and (acc + cost(fill[fi]) / 2 <= target or i == len(mf) - 1):
                e(fill[fi])
                acc += cost(fill[fi])
                fi += 1

    def merge(a, b):
        if not a:
            return list(b)
        out, bi = [], 0
        for i, x in enumerate(a):
            out.append(x)
            while bi < len(b) and (bi + 1) * len(a) <= (i + 1) * len(b):
                out.append(b[bi])
                bi += 1
        out += b[bi:]
        return out

    for s in barrier([('q', 2), ('k', 0)]):
        e(s)
    stamp(2)
    e('s_mul_i32 s%d, s%d, %d' % (S_T1, S_W, 48 * 256))
    for ks in range(4):
        e('v_add_u32 v%d, s%d, v%d' % (V_T, S_T1, V_KADDR + ks))
        for rt in range(3):
            e('ds_read_b128 %s, v%d offset:%d' % (ar(A_Q + (rt * 4 + ks) * 4, 4), V_T, rt * 4096))
    if not OPT['compute']:
        pass
    for s in kfrag_reads(0):
        e(s)

    LAG = 4
    nxt = [NSLOT]
    freeq = []

    def issue_free(slots):
        out = []
        for sl in slots:
            if nxt[0] < len(CHUNKS):
                out += dma_chunk(nxt[0], sl)
                nxt[0] += 1
        return out

    pre = kfrag_reads(1)
    interleave(qk(0), pre)
    PVS = LAG + 1
    nslots = 48 + PVS
    kreads = {}
    vreads = {}
    bars = {}
    for s in range(2, 16):
        rd = ('K', s)
        for i in range(3):
            kreads.setdefault(3 * s - 4 + i, []).append((s, i))
    for s in range(16):
        for i in range(3):
            vreads.setdefault(3 * s + PVS - 3 + i, []).append((s, i))
    for t in range(nslots):
        mf, fill, pre = [], [], []
        if (t + 4) % 6 == 0 and 1 <= (t + 4) // 6 <= 9:
            j = (t + 4) // 6
            need = []
            if j <= 7:
                need.append(('k', j))
            if 1 <= j <= 8:
                need.append(('v', j - 1))
            if need:
                pre += barrier(need)
                fr = []
                if j == 1:
                    fr = [0, 1, 2]
                    fr.append(SLOT[('k', 0)])
                else:
                    if j - 1 <= 7:
                        fr.append(SLOT[('k', j - 1)])
                    if j - 2 >= 0:
                        fr.append(SLOT[('v', j - 2)])
                pre += issue_free(fr)
        if t + 1 < 48:
            mf += qk(t + 1)
        if 0 <= t - PVS < 48:
            mf += pv(t - PVS)
        rd = []
        for (s, i) in kreads.get(t, []):
            r = kfrag_reads(s)
            rd += r[[0, 3, 6][i]:[3, 6, 8][i]]
        for (s, i) in vreads.get(t, []):
            r = vfrag_reads(s)
            rd += r[[0, 6, 12][i]:[6, 12, 16][i]]
        if t < 48:
            fill = merge(sm(t), rd)
        else:
            fill = rd
        for s in pre:
            e(s)
        if t in (8, 20, 32, 44) and OPT['stamps']:
            stamp(3 + [8, 20, 32, 44].index(t))
        interleave(mf, fill)
    stamp(7)
    for rt in range(3):
        t, t2 = V_T, V_T + 1
        L = V_L + rt
        e('v_mov_b32 v%d, v%d' % (t2, L))
        e('v_permlane16_swap_b32 v%d, v%d' % (L, t2))
        e('v_add_f32 v%d, v%d, v%d' % (L, L, t2))
        e('v_mov_b32 v%d, v%d' % (t2, L))
        e('v_permlane32_swap_b32 v%d, v%d' % (L, t2))
        e('v_add_f32 v%d, v%d, v%d' % (L, L, t2))
        e('v_rcp_f32 v%d, v%d' % (L, L))
    for rt in range(3):
        for dp in range(4):
            X = V_K + ((rt * 4 + dp) & 3) * 16
            for h in range(2):
                for r in range(4):
                    e('v_accvgpr_read_b32 v%d, a%d' % (X + h * 4 + r, A_O + (rt * 8 + dp * 2 + h) * 4 + r))
            for i in range(8):
                e('v_mul_f32 v%d, v%d, v%d' % (X + i, X + i, V_L + rt))
            for i in range(4):
                e('v_cvt_pk_bf16_f32 v%d, v%d, v%d' % (X + 8 + i, X + 2 * i, X + 2 * i + 1))
            e('v_permlane16_swap_b32 v%d, v%d' % (X + 8, X + 10))
            e('v_permlane16_swap_b32 v%d, v%d' % (X + 9, X + 11))
            if OPT['store']:
                e('buffer_store_dwordx4 %s, v%d, s[%d:%d], 0 offen offset:%d' % (
                    vr(X + 8, 4), V_OADDR, SRD_O, SRD_O + 3, dp * 64) if rt == 0 else
                  'buffer_store_dwordx4 %s, v%d, s[%d:%d], s%d offen offset:%d' % (
                    vr(X + 8, 4), V_OADDR, SRD_O, SRD_O + 3, S_T0, dp * 64))
        e('s_mov_b32 s%d, %d' % (S_T0, (rt + 1) * 4096))
    if OPT['stamps']:
        e('s_waitcnt vmcnt(0)')
    stamp(8)
    e('L_end:')
    e('s_endpgm')
    return I


I = build()
f = finalize(I)
txt = HDR.format(n=NAME) + f.text() + FTR.format(n=NAME, nv=512, ao=256)
open(sys.argv[1], 'w').write(txt)
print('instrs', len(f.out), 'nops', f.n_nop, 'waits', f.n_wait, file=sys.stderr)
```

```python
import sys, math
from asmlib import Inst, finalize

NAME = "standalone__gqa_softmax__near_ridge"
HDR = """; Kernarg layout for this problem (48 bytes, ptrs only, base s[0:1]):
; @launch grid=(256,1,1) block=(256,1,1) lds=163840
.amdgcn_target "amdgcn-amd-amdhsa--gfx950"
.text
.globl {n}_kernel
.p2align 8
.type {n}_kernel,@function
{n}_kernel:
"""
FTR = """
.section .rodata,"a"
.p2align 6
.amdhsa_kernel {n}_kernel
  .amdhsa_next_free_vgpr {nv}
  .amdhsa_next_free_sgpr 96
  .amdhsa_accum_offset {ao}
  .amdhsa_group_segment_fixed_size 0
  .amdhsa_kernarg_size 48
  .amdhsa_user_sgpr_count 2
  .amdhsa_user_sgpr_kernarg_segment_ptr 1
  .amdhsa_system_sgpr_workgroup_id_x 1
  .amdhsa_float_denorm_mode_32 3
.end_amdhsa_kernel
"""

OPT = dict(stamps=0, compute=1, store=1, dma=1, rep=1, cyc=0, ldflag='', stflag='')
for a in sys.argv[2:]:
    k, v = a.split('=')
    OPT[k] = int(v) if v.lstrip('-').isdigit() else v.replace('+', ' ')

C_SCALE = (128 ** -0.5) * math.log2(math.e)


def f2u(x):
    import struct
    return struct.unpack('<I', struct.pack('<f', x))[0]


SRD_Q, SRD_K, SRD_V, SRD_O = 4, 8, 12, 16
S_QOFF, S_KVOFF, S_W, S_C, S_T0, S_T1 = 28, 29, 30, 31, 32, 33
S_M0BASE = 34
S_WS = 36
S_ST = 40
V_KADDR = 8
V_VADDR = 20
V_DMA0, V_DMA1 = 44, 45
V_MC = 46
V_L = 49
V_OADDR = 52
V_T = 53
V_S = 56
V_P = 72
NPBUF = 12
V_K = 128
V_V = 192
A_O = 0
A_Q = 96


def vr(b, n=1):
    return 'v%d' % b if n == 1 else 'v[%d:%d]' % (b, b + n - 1)


def ar(b, n=1):
    return 'a%d' % b if n == 1 else 'a[%d:%d]' % (b, b + n - 1)


def lds_addr(kind, idx, byte):
    region, imm = byte >> 16, byte & 0xffff
    if kind == 'k':
        return V_KADDR + region * 4 + idx, imm
    return V_VADDR + region * 8 + idx, imm


CHUNKS = [('q', 0), ('q', 1), ('q', 2), ('k', 0), ('k', 1), ('v', 0)]
for j in range(2, 8):
    CHUNKS += [('k', j), ('v', j - 1)]
CHUNKS += [('v', 7)]
assert len(CHUNKS) == 19
NSLOT = 10
SLOT = {}


def build():
    I = []
    e = lambda s: I.append(Inst(s))

    def stamp(k):
        if not OPT['stamps']:
            return
        e(('s_memtime' if OPT['cyc'] else 's_memrealtime') + ' s[%d:%d]' % (S_ST, S_ST + 1))
        e('s_waitcnt lgkmcnt(0)')
        e('v_mov_b32 v4, s%d' % S_ST)
        e('v_mov_b32 v5, s%d' % (S_ST + 1))
        e('v_mov_b32 v6, %d' % (k * 8))
        e('s_cmp_lg_u32 s%d, 0' % S_W)
        e('s_cbranch_scc1 L_st%d' % k)
        e('global_store_dwordx2 v6, v[4:5], s[%d:%d]' % (S_WS, S_WS + 1))
        e('L_st%d:' % k)

    e('s_cmp_ge_u32 s2, 256')
    e('s_cbranch_scc1 L_end')
    e('s_load_dwordx4 s[20:23], s[0:1], 0')
    e('s_load_dwordx4 s[24:27], s[0:1], 16')
    if OPT['stamps']:
        e('s_load_dwordx2 s[%d:%d], s[0:1], 40' % (S_WS, S_WS + 1))
    e('s_and_b32 s%d, s2, 7' % S_T0)
    e('s_lshr_b32 s%d, s2, 4' % S_T1)
    e('s_lshl_b32 s%d, s%d, 3' % (S_T1, S_T1))
    e('s_or_b32 s%d, s%d, s%d' % (S_T0, S_T0, S_T1))
    e('s_lshr_b32 s%d, s2, 3' % S_T1)
    e('s_and_b32 s%d, s%d, 1' % (S_T1, S_T1))
    e('s_lshl_b32 s%d, s%d, 17' % (S_KVOFF, S_T0))
    e('s_mul_i32 s%d, s%d, 98304' % (S_QOFF, S_T0))
    e('s_mul_i32 s%d, s%d, 49152' % (S_T1, S_T1))
    e('s_add_u32 s%d, s%d, s%d' % (S_QOFF, S_QOFF, S_T1))
    e('v_lshrrev_b32 v1, 6, v0')
    e('v_readfirstlane_b32 s%d, v1' % S_W)
    e('v_and_b32 v0, 63, v0')
    e('s_lshl_b32 s%d, s%d, 12' % (S_M0BASE, S_W))
    e('v_lshrrev_b32 v1, 4, v0')
    e('v_and_b32 v2, 15, v0')
    e('v_lshlrev_b32 v3, 1, v1')
    e('v_xor_b32 v3, v2, v3')
    e('v_lshlrev_b32 v3, 4, v3')
    e('v_lshl_add_u32 v3, v1, 8, v3')
    e('v_add_u32 v%d, s%d, v3' % (V_DMA0, S_M0BASE))
    e('v_xor_b32 v%d, 128, v%d' % (V_DMA1, V_DMA0))
    e('s_waitcnt lgkmcnt(0)')
    for srd, p, sz in ((SRD_Q, 20, 12582912), (SRD_K, 22, 16777216), (SRD_V, 24, 16777216), (SRD_O, 26, 12582912)):
        e('s_mov_b32 s%d, s%d' % (srd, p))
        e('s_and_b32 s%d, s%d, 0xffff' % (srd + 1, p + 1))
        e('s_mov_b32 s%d, %d' % (srd + 2, sz))
        e('s_mov_b32 s%d, 0x20000' % (srd + 3))
    if OPT['stamps']:
        e('s_mul_i32 s%d, s2, %d' % (S_T0, OPT['stamps'] * 8))
        e('s_add_u32 s%d, s%d, s%d' % (S_WS, S_WS, S_T0))
        e('s_addc_u32 s%d, s%d, 0' % (S_WS + 1, S_WS + 1))
    stamp(0)

    issued = [0]

    def dma_chunk(c, slot):
        buf, t = CHUNKS[c]
        SLOT[(buf, t)] = slot
        srd = {'q': SRD_Q, 'k': SRD_K, 'v': SRD_V}[buf]
        base = S_QOFF if buf == 'q' else S_KVOFF
        out = []
        out.append('s_add_u32 s%d, s%d, %d' % (S_T0, base, t * 16384))
        out.append('s_add_u32 m0, s%d, %d' % (S_M0BASE, slot * 16384))
        for j in range(4):
            out.append('buffer_load_dwordx4 v%d, s[%d:%d], s%d offen offset:%d %s lds' % (
                V_DMA1 if j & 1 else V_DMA0, srd, srd + 3, S_T0, j * 1024, OPT['ldflag']))
        issued[0] += 1
        if not OPT['dma']:
            return []
        return out

    for c in range(NSLOT):
        for s in dma_chunk(c, c):
            e(s)
    stamp(1)
    e('v_and_b32 v4, 7, v0')
    e('v_lshlrev_b32 v4, 1, v4')
    e('v_xor_b32 v4, v1, v4')
    e('v_lshlrev_b32 v4, 4, v4')
    e('v_lshl_add_u32 v4, v2, 8, v4')
    for ks in range(4):
        e('v_xor_b32 v%d, %d, v4' % (V_KADDR + ks, ks * 64))
        e('v_add_u32 v%d, 0x10000, v%d' % (V_KADDR + 4 + ks, V_KADDR + ks))
        e('v_add_u32 v%d, 0x20000, v%d' % (V_KADDR + 8 + ks, V_KADDR + ks))
    e('v_bfe_u32 v4, v0, 2, 2')
    e('v_lshl_add_u32 v4, v1, 2, v4')
    e('v_and_b32 v5, 7, v4')
    e('v_lshlrev_b32 v5, 1, v5')
    e('v_bfe_u32 v6, v0, 1, 1')
    e('v_xor_b32 v5, v5, v6')
    e('v_lshlrev_b32 v5, 4, v5')
    e('v_and_b32 v6, 1, v0')
    e('v_lshl_add_u32 v5, v6, 3, v5')
    e('v_lshl_add_u32 v4, v4, 8, v5')
    for dt in range(8):
        e('v_xor_b32 v%d, %d, v4' % (V_VADDR + dt, dt * 32))
        e('v_add_u32 v%d, 0x10000, v%d' % (V_VADDR + 8 + dt, V_VADDR + dt))
        e('v_add_u32 v%d, 0x20000, v%d' % (V_VADDR + 16 + dt, V_VADDR + dt))
    e('s_mul_i32 s%d, s%d, %d' % (S_T1, S_W, 48 * 256))
    e('s_add_u32 s%d, s%d, s%d' % (S_T1, S_T1, S_QOFF))
    e('v_and_b32 v4, 1, v1')
    e('v_lshlrev_b32 v4, 5, v4')
    e('v_lshrrev_b32 v5, 1, v1')
    e('v_lshl_add_u32 v4, v5, 4, v4')
    e('v_lshl_add_u32 v4, v2, 8, v4')
    e('v_add_u32 v%d, s%d, v4' % (V_OADDR, S_T1))
    e('s_mov_b32 s%d, 0x%08x' % (S_C, f2u(C_SCALE)))
    for i in range(96):
        e('v_accvgpr_write_b32 a%d, 0' % (A_O + i))
    for rt in range(3):
        e('v_mov_b32 v%d, 0' % (V_L + rt))

    def need_pos(bufs):
        return max(CHUNKS.index(b) for b in bufs)

    def barrier(bufs):
        n = 4 * (issued[0] - 1 - need_pos(bufs))
        return ['s_waitcnt vmcnt(%d) lgkmcnt(0)' % n, 's_barrier']

    def kfrag_reads(s):
        j, h = s >> 1, s & 1
        out = []
        for kt in range(2):
            for ks in range(4):
                byte = SLOT[('k', j)] * 16384 + (h * 32 + kt * 16) * 256
                reg, imm = lds_addr('k', ks, byte)
                out.append('ds_read_b128 %s, v%d offset:%d' % (vr(V_K + (s & 1) * 32 + (kt * 4 + ks) * 4, 4), reg, imm))
        return out

    def vfrag_reads(s):
        j, h = s >> 1, s & 1
        out = []
        for dt in range(8):
            for half in range(2):
                byte = SLOT[('v', j)] * 16384 + (h * 32 + half * 16) * 256
                reg, imm = lds_addr('v', dt, byte)
                out.append('ds_read_b64_tr_b16 %s, v%d offset:%d' % (
                    vr(V_V + (s & 1) * 32 + dt * 4 + half * 2, 2), reg, imm))
        return out

    def qk(u):
        s, rt = divmod(u, 3)
        out = []
        for kt in range(2):
            d = vr(V_S + (u & 1) * 8 + kt * 4, 4)
            for ks in range(4):
                out.append('v_mfma_f32_16x16x32_bf16 %s, %s, %s, %s' % (
                    d, vr(V_K + (s & 1) * 32 + (kt * 4 + ks) * 4, 4), ar(A_Q + (rt * 4 + ks) * 4, 4),
                    d if ks else '0'))
        return out

    def pv(u):
        s, rt = divmod(u, 3)
        out = []
        for dt in range(8):
            d = ar(A_O + (rt * 8 + dt) * 4, 4)
            out.append('v_mfma_f32_16x16x32_bf16 %s, %s, %s, %s' % (
                d, vr(V_V + (s & 1) * 32 + dt * 4, 4), vr(V_P + (u % NPBUF) * 4, 4), d))
        return out

    def sm(u):
        s, rt = divmod(u, 3)
        S = V_S + (u & 1) * 8
        P = V_P + (u % NPBUF) * 4
        out = []
        if s == 0:
            t, t2 = V_T, V_T + 1
            out.append('v_max3_f32 v%d, v%d, v%d, v%d' % (t, S, S + 1, S + 2))
            out.append('v_max3_f32 v%d, v%d, v%d, v%d' % (t, t, S + 3, S + 4))
            out.append('v_max3_f32 v%d, v%d, v%d, v%d' % (t, t, S + 5, S + 6))
            out.append('v_max_f32 v%d, v%d, v%d' % (t, t, S + 7))
            out.append('v_mov_b32 v%d, v%d' % (t2, t))
            out.append('v_permlane16_swap_b32 v%d, v%d' % (t, t2))
            out.append('v_max_f32 v%d, v%d, v%d' % (t, t, t2))
            out.append('v_mov_b32 v%d, v%d' % (t2, t))
            out.append('v_permlane32_swap_b32 v%d, v%d' % (t, t2))
            out.append('v_max_f32 v%d, v%d, v%d' % (t, t, t2))
            out.append('v_mul_f32 v%d, s%d, v%d' % (V_MC + rt, S_C, t))
        for i in range(8):
            out.append('v_fma_f32 v%d, v%d, s%d, -v%d' % (S + i, S + i, S_C, V_MC + rt))
        for i in range(8):
            out.append('v_exp_f32 v%d, v%d' % (S + i, S + i))
            if i >= 1:
                out.append('v_add_f32 v%d, v%d, v%d' % (V_L + rt, V_L + rt, S + i - 1))
            if i & 1 and i >= 3:
                out.append('v_cvt_pk_bf16_f32 v%d, v%d, v%d' % (P + (i - 3) // 2, S + i - 3, S + i - 2))
        out.append('v_add_f32 v%d, v%d, v%d' % (V_L + rt, V_L + rt, S + 7))
        out.append('v_cvt_pk_bf16_f32 v%d, v%d, v%d' % (P + 3, S + 6, S + 7))
        return out

    def cost(s):
        if s.startswith('v_exp') or s.startswith('v_rcp'):
            return 8
        if s.startswith('s_'):
            return 2
        return 4

    def interleave(mf, fill):
        if not mf:
            for s in fill:
                e(s)
            return
        tot = sum(cost(s) for s in fill)
        acc, fi = 0, 0
        for i, m in enumerate(mf):
            e(m)
            target = tot * (i + 1) / len(mf)
            while fi < len(fill) and (acc + cost(fill[fi]) / 2 <= target or i == len(mf) - 1):
                e(fill[fi])
                acc += cost(fill[fi])
                fi += 1

    def merge(a, b):
        if not a:
            return list(b)
        out, bi = [], 0
        for i, x in enumerate(a):
            out.append(x)
            while bi < len(b) and (bi + 1) * len(a) <= (i + 1) * len(b):
                out.append(b[bi])
                bi += 1
        out += b[bi:]
        return out

    for s in barrier([('q', 2), ('k', 0)]):
        e(s)
    stamp(2)
    e('s_mul_i32 s%d, s%d, %d' % (S_T1, S_W, 48 * 256))
    for ks in range(4):
        e('v_add_u32 v%d, s%d, v%d' % (V_T, S_T1, V_KADDR + ks))
        for rt in range(3):
            e('ds_read_b128 %s, v%d offset:%d' % (ar(A_Q + (rt * 4 + ks) * 4, 4), V_T, rt * 4096))
    if not OPT['compute']:
        pass
    for s in kfrag_reads(0):
        e(s)

    LAG = 4
    nxt = [NSLOT]
    freeq = []

    def issue_free(slots):
        out = []
        for sl in slots:
            if nxt[0] < len(CHUNKS):
                out += dma_chunk(nxt[0], sl)
                nxt[0] += 1
        return out

    if OPT['rep'] > 1:
        e('s_mov_b32 s50, 0')
        e('s_mov_b32 s51, 0')
        e('L_rep:')
        e('%s s[%d:%d]' % ('s_memtime' if OPT['cyc'] else 's_memrealtime', S_ST, S_ST + 1))
        e('s_waitcnt lgkmcnt(0)')
        e('v_mov_b32 v4, s%d' % S_ST)
        e('v_mov_b32 v5, s%d' % (S_ST + 1))
        e('v_mov_b32 v6, s51')
        e('global_store_dwordx2 v6, v[4:5], s[%d:%d] offset:24' % (S_WS, S_WS + 1))
    pre = kfrag_reads(1)
    interleave(qk(0), pre)
    PVS = LAG + 1
    nslots = 48 + PVS
    kreads = {}
    vreads = {}
    bars = {}
    for s in range(2, 16):
        rd = ('K', s)
        for i in range(3):
            kreads.setdefault(3 * s - 4 + i, []).append((s, i))
    for s in range(16):
        for i in range(3):
            vreads.setdefault(3 * s + PVS - 3 + i, []).append((s, i))
    for t in range(nslots):
        mf, fill, pre = [], [], []
        if (t + 4) % 6 == 0 and 1 <= (t + 4) // 6 <= 9:
            j = (t + 4) // 6
            need = []
            if j <= 7:
                need.append(('k', j))
            if 1 <= j <= 8:
                need.append(('v', j - 1))
            if need:
                pre += barrier(need)
                fr = []
                if j == 1:
                    fr = [0, 1, 2]
                    fr.append(SLOT[('k', 0)])
                else:
                    if j - 1 <= 7:
                        fr.append(SLOT[('k', j - 1)])
                    if j - 2 >= 0:
                        fr.append(SLOT[('v', j - 2)])
                pre += issue_free(fr)
        if t + 1 < 48:
            mf += qk(t + 1)
        if 0 <= t - PVS < 48:
            mf += pv(t - PVS)
        rd = []
        for (s, i) in kreads.get(t, []):
            r = kfrag_reads(s)
            rd += r[[0, 3, 6][i]:[3, 6, 8][i]]
        for (s, i) in vreads.get(t, []):
            r = vfrag_reads(s)
            rd += r[[0, 6, 12][i]:[6, 12, 16][i]]
        if t < 48:
            fill = merge(sm(t), rd)
        else:
            fill = rd
        for s in pre:
            e(s)
        if t in (8, 20, 32, 44) and OPT['stamps'] and OPT['rep'] == 1:
            stamp(3 + [8, 20, 32, 44].index(t))
        interleave(mf, fill)
    if OPT['rep'] > 1:
        e('s_add_u32 s50, s50, 1')
        e('s_add_u32 s51, s51, 8')
        e('s_nop 7')
        e('s_nop 7')
        e('s_cmp_lt_u32 s50, %d' % OPT['rep'])
        e('s_cbranch_scc1 L_rep')
    stamp(7)
    for rt in range(3):
        t, t2 = V_T, V_T + 1
        L = V_L + rt
        e('v_mov_b32 v%d, v%d' % (t2, L))
        e('v_permlane16_swap_b32 v%d, v%d' % (L, t2))
        e('v_add_f32 v%d, v%d, v%d' % (L, L, t2))
        e('v_mov_b32 v%d, v%d' % (t2, L))
        e('v_permlane32_swap_b32 v%d, v%d' % (L, t2))
        e('v_add_f32 v%d, v%d, v%d' % (L, L, t2))
        e('v_rcp_f32 v%d, v%d' % (L, L))
    for rt in range(3):
        for dp in range(4):
            X = V_K + ((rt * 4 + dp) & 3) * 16
            for h in range(2):
                for r in range(4):
                    e('v_accvgpr_read_b32 v%d, a%d' % (X + h * 4 + r, A_O + (rt * 8 + dp * 2 + h) * 4 + r))
            for i in range(8):
                e('v_mul_f32 v%d, v%d, v%d' % (X + i, X + i, V_L + rt))
            for i in range(4):
                e('v_cvt_pk_bf16_f32 v%d, v%d, v%d' % (X + 8 + i, X + 2 * i, X + 2 * i + 1))
            e('v_permlane16_swap_b32 v%d, v%d' % (X + 8, X + 10))
            e('v_permlane16_swap_b32 v%d, v%d' % (X + 9, X + 11))
            if OPT['store']:
                e('buffer_store_dwordx4 %s, v%d, s[%d:%d], 0 offen offset:%d %s' % (
                    vr(X + 8, 4), V_OADDR, SRD_O, SRD_O + 3, dp * 64, OPT['stflag']) if rt == 0 else
                  'buffer_store_dwordx4 %s, v%d, s[%d:%d], s%d offen offset:%d %s' % (
                    vr(X + 8, 4), V_OADDR, SRD_O, SRD_O + 3, S_T0, dp * 64, OPT['stflag']))
        e('s_mov_b32 s%d, %d' % (S_T0, (rt + 1) * 4096))
    if OPT['stamps']:
        e('s_waitcnt vmcnt(0)')
    stamp(8)
    e('L_end:')
    e('s_endpgm')
    return I


I = build()
f = finalize(I)
txt = HDR.format(n=NAME) + f.text() + FTR.format(n=NAME, nv=512, ao=256)
open(sys.argv[1], 'w').write(txt)
print('instrs', len(f.out), 'nops', f.n_nop, 'waits', f.n_wait, file=sys.stderr)
```
